```python
import torch

def _softmax(x, axis=-1):
    return torch.softmax(x, dim=axis)

def _gelu(x):
    return torch.nn.functional.gelu(x, approximate='tanh')

def _silu(x):
    return torch.nn.functional.silu(x)

def _sigmoid(x):
    return torch.sigmoid(x)

def _layernorm(x, axis=-1, eps=1e-05):
    m = x.mean(dim=axis, keepdim=True)
    v = x.var(dim=axis, keepdim=True, unbiased=False)
    return (x - m) / torch.sqrt(v + eps)

def _scatter_add(tgt, idx, src, axis=0):
    return tgt.clone().index_add_(axis, idx, src)

def _segment_sum(src, seg, n):
    out = torch.zeros((n,) + src.shape[1:], dtype=src.dtype)
    return out.index_add_(0, seg, src)

def _pad(x, pw):
    flat = tuple((v for pair in reversed(pw) for v in pair))
    return torch.nn.functional.pad(x, flat)
kernel_name = 'adaLN_cond__gqa_block_cached__dense_activation_silu__decode'

def setup_inputs():

    _w = lambda a: (lambda t: t.to(torch.bfloat16) if t.is_floating_point() else t)(torch.as_tensor(a))

    def _A_setup():
        B, Sq, D = (1, 1, 640)
        Hq, Hkv, Sk, Dh = (32, 32, 16384, 192)
        assert Hq % Hkv == 0, (Hq, Hkv)
        return {'x': _w((lambda *s: torch.randn(*s, dtype=torch.bfloat16) * 0.1)(B, Sq, D)), 'k_cache': _w((lambda *s: torch.randn(*s, dtype=torch.bfloat16) * 0.8)(B, Hkv, Sk, Dh)), 'v_cache': _w((lambda *s: torch.randn(*s, dtype=torch.bfloat16) * 3.2)(B, Hkv, Sk, Dh)), 'wq': _w((lambda *s: torch.randn(*s, dtype=torch.bfloat16) * 0.8)(D, Hq * Dh) * D ** (-0.5)), 'wo': _w((lambda *s: torch.randn(*s, dtype=torch.bfloat16) * 3.2)(Hq * Dh, D) * (Hq * Dh) ** (-0.5))}
    _A_in = _A_setup()

    def _B_setup():
        B, S, D, F = (1, 1, 640, 1536)
        return {'x': _w((lambda *s: torch.randn(*s, dtype=torch.bfloat16) * 0.1)(B, S, D)), 'w1': _w((lambda *s: torch.randn(*s, dtype=torch.bfloat16) * 3.2)(D, F) * D ** (-0.5)), 'w2': _w((lambda *s: torch.randn(*s, dtype=torch.bfloat16) * 3.2)(F, D) * F ** (-0.5))}
    _B_in = _B_setup()
    return {'A_x': _A_in['x'], 'A_k_cache': _A_in['k_cache'], 'A_v_cache': _A_in['v_cache'], 'A_wq': _A_in['wq'], 'A_wo': _A_in['wo'], 'B_x': _B_in['x'], 'B_w1': _B_in['w1'], 'B_w2': _B_in['w2'], 'c': _w((lambda *s: torch.randn(*s, dtype=torch.bfloat16) * 0.2)(1, 640) * 8.0), 'w_mod': _w((lambda *s: torch.randn(*s, dtype=torch.bfloat16) * 0.2)(640, 6 * 640) * 640 ** (-0.5) * 8.0)}

def reference(A_x, A_k_cache, A_v_cache, A_wq, A_wo, B_x, B_w1, B_w2, c, w_mod):

    def _A_ref(x, k_cache, v_cache, wq, wo):
        B, Sq, D = x.shape
        Hq, Dh = (32, 192)
        Hkv = k_cache.shape[1]
        rep = Hq // Hkv
        q = (lambda x, *d: x.permute(*d))((x @ wq).reshape(B, Sq, Hq, Dh), 0, 2, 1, 3)
        k = (lambda x, n, axis: torch.repeat_interleave(x, n, dim=axis))(k_cache, rep, axis=1)
        v = (lambda x, n, axis: torch.repeat_interleave(x, n, dim=axis))(v_cache, rep, axis=1)
        scores = torch.einsum('bhqd,bhkd->bhqk', q, k) * Dh ** (-0.5)
        p = _softmax(scores, axis=-1)
        o = torch.einsum('bhqk,bhkd->bhqd', p, v)
        return (lambda x, *d: x.permute(*d))(o, 0, 2, 1, 3).reshape(B, Sq, Hq * Dh) @ wo

    def _B_ref(x, w1, w2):
        h = torch.einsum('bsd,df->bsf', x, w1)
        h = _silu(h)
        out = torch.einsum('bsf,fd->bsd', h, w2)
        return out
    x = A_x
    mod = (_silu(c) @ w_mod).reshape(c.shape[0], 6, 1, -1)
    sa, ca, ga, sb, cb, gb = (mod[:, 0].clone(), mod[:, 1].clone(), mod[:, 2].clone(), mod[:, 3].clone(), mod[:, 4].clone(), mod[:, 5].clone())
    h = _layernorm(x, axis=-1) * (1 + ca) + sa
    x = x + ga * _A_ref(h, A_k_cache, A_v_cache, A_wq, A_wo)
    h = _layernorm(x, axis=-1) * (1 + cb) + sb
    x = x + gb * _B_ref(h, B_w1, B_w2)
    return x
```

```python
NAME = "adaLN_cond__gqa_block_cached__dense_activation_silu__decode"
KN = NAME + "_kernel"
HDR = open("cdna_kernels/%s.s.ref" % NAME).read().split("; Override launch")[0]

class Asm:
    def __init__(self):
        self.lines = []
        self.nlab = 0
    def __call__(self, s=""):
        for l in s.split("\n"):
            self.lines.append(l if l.strip().endswith(":") else "    " + l.strip())
    def label(self, name):
        self.lines.append(name + ":")
    def newlab(self, p="L"):
        self.nlab += 1
        return "%s_%d" % (p, self.nlab)
    def text(self):
        return "\n".join(self.lines) + "\n"

def kernel_desc(name, vgpr, sgpr=102, accum=None):
    if accum is None:
        accum = min(256, (vgpr + 3) // 4 * 4)
    return f""".amdhsa_kernel {name}
  .amdhsa_next_free_vgpr {vgpr}
  .amdhsa_next_free_sgpr {sgpr}
  .amdhsa_accum_offset {accum}
  .amdhsa_group_segment_fixed_size 0
  .amdhsa_kernarg_size 104
  .amdhsa_user_sgpr_count 2
  .amdhsa_user_sgpr_kernarg_segment_ptr 1
  .amdhsa_system_sgpr_workgroup_id_x 1
  .amdhsa_float_denorm_mode_32 3
.end_amdhsa_kernel
"""

def wrap(kernels):
    s = HDR
    if len(kernels) == 1 and kernels[0]["name"] == KN:
        k = kernels[0]
        s += "; @launch grid=(%d,1,1) block=(%d,1,1) lds=%d\n" % (k["grid"], k["block"], k["lds"])
    else:
        for k in kernels:
            s += "; @launch kernel=%s grid=(%d,1,1) block=(%d,1,1) lds=%d\n" % (k["name"], k["grid"], k["block"], k["lds"])
    s += '.amdgcn_target "amdgcn-amd-amdhsa--gfx950"\n.text\n'
    seen = set()
    for k in kernels:
        if k["name"] in seen: continue
        seen.add(k["name"])
        s += ".globl %s\n.p2align 8\n.type %s,@function\n%s:\n" % (k["name"], k["name"], k["name"])
        s += k["body"]
    s += '.section .rodata,"a"\n'
    seen = set()
    for k in kernels:
        if k["name"] in seen: continue
        seen.add(k["name"])
        s += ".p2align 6\n" + kernel_desc(k["name"], k["vgpr"], k.get("sgpr", 102), k.get("accum"))
    return s
```

```python
import sys, struct
from asmlib import *

def f2u(x): return struct.unpack("<I", struct.pack("<f", x))[0]
LOG2E = hex(f2u(1.4426950408889634))
NLOG2E = hex(f2u(-1.4426950408889634))
SCALE = hex(f2u(192 ** -0.5))
INV640 = hex(f2u(1.0 / 640))
EPS = hex(f2u(1e-5))
WSB = 805306368
STAMP = WSB - (1 << 20)
W_CNT = 4096
W_MODP = 16384
W_QP = 0x30000
W_OP = 0x80000
W_ML = 0xC0000
W_YP = 0xD0000
W_ZP = 0xF0000
LQ = 0; LF = 512; LML = 6656; LS0 = 6912; LS1 = 8192
LWO = 10240; LWD = 11776
LO = 512
LPAR = 21504
LY = 32256
LH2 = 43776; LX2 = 46848; LZ = 49920
LDS_BYTES = 51968
HEADB = 16384 * 384
SPIN = 40000
NST = 12

def gen(X=56, L=2, R=8, stamps=False, PACE=2, NMLP=24, SLEEP=1):
    a = Asm()
    WPG = 32
    NT = 2048
    TB = 3072
    def stamp(idx):
        if stamps:
            a(f"s_memrealtime s[{70+2*idx}:{71+2*idx}]")
    def rbf(dst, src):
        a(f"v_cvt_pk_bf16_f32 {dst}, {src}, {src}")
        a(f"v_lshlrev_b32 {dst}, 16, {dst}")
    def dpp(op, v, ctl, rm="0xf", bm="0xf"):
        a("s_nop 1")
        a(f"{op}_dpp {v}, {v}, {v} {ctl} row_mask:{rm} bank_mask:{bm}")
    def red8(op, v):
        dpp(op, v, "quad_perm:[1,0,3,2]"); dpp(op, v, "quad_perm:[2,3,0,1]"); dpp(op, v, "row_half_mirror")
    def red64(op, v, sdst):
        red8(op, v); dpp(op, v, "row_mirror")
        dpp(op, v, "row_bcast:15", rm="0xa"); dpp(op, v, "row_bcast:31", rm="0xc")
        a("s_nop 0"); a(f"v_readlane_b32 {sdst}, {v}, 63"); a("s_nop 1")
    def srd(n, lo, size):
        a(f"s_mov_b32 s{n}, s{lo}\ns_mov_b32 s{n+1}, s{lo+1}\ns_mov_b32 s{n+2}, {size}\ns_mov_b32 s{n+3}, 0x20000")
    def exec_valid():
        a("s_mov_b32 exec_lo, 0x00ff00ff\ns_mov_b32 exec_hi, 0xff00ff00")
    def exec_all():
        a("s_mov_b64 exec, -1")
    def make_tag():
        a("s_mul_i32 s6, s6, 0x9e3779b1\ns_add_u32 s6, s6, 0x7f4a7c15")
    MK = 36
    def masks(base=MK):
        a(f"""
        v_and_b32 v{base}, 1, v0
        v_lshlrev_b32 v{base}, 4, v{base}
        v_mov_b32 v{base+1}, 0xffff
        v_lshlrev_b32 v{base+3}, v{base}, v{base+1}
        v_bfe_u32 v{base+2}, v0, 1, 2
        v_cmp_eq_u32 vcc, 0, v{base+2}
        v_cmp_eq_u32 s[58:59], 1, v{base+2}
        s_nop 1
        v_cndmask_b32 v{base}, 0, v{base+3}, vcc
        v_cndmask_b32 v{base+1}, 0, v{base+3}, s[58:59]
        v_cmp_eq_u32 vcc, 2, v{base+2}
        v_cmp_eq_u32 s[58:59], 3, v{base+2}
        s_nop 1
        v_cndmask_b32 v{base+2}, 0, v{base+3}, vcc
        v_cndmask_b32 v{base+3}, 0, v{base+3}, s[58:59]
        """)
    def bprep(bb, src):
        for r in range(4):
            a(f"v_and_b32 v{bb+r}, {src}, v{MK+r}")
    def mfma(acc, A, bb):
        a(f"v_mfma_f32_16x16x32_bf16 v[{acc}:{acc+3}], v[{A}:{A+3}], v[{bb}:{bb+3}], v[{acc}:{acc+3}]")
    def phi2d(dst, src, t):
        a(f"""
        v_and_b32 {t}, 3, {src}
        v_lshlrev_b32 {t}, 3, {t}
        v_and_b32 {dst}, 0xffffffe0, {src}
        v_or_b32 {dst}, {dst}, {t}
        v_bfe_u32 {t}, {src}, 2, 3
        v_or_b32 {dst}, {dst}, {t}
        """)
    def d2phi(dst, src, t):
        a(f"""
        v_and_b32 {t}, 7, {src}
        v_lshlrev_b32 {t}, 2, {t}
        v_and_b32 {dst}, 0xffffffe0, {src}
        v_or_b32 {dst}, {dst}, {t}
        v_bfe_u32 {t}, {src}, 3, 2
        v_or_b32 {dst}, {dst}, {t}
        """)
    def dexch_addr(dst, t):
        a(f"""
        v_bfe_u32 {t}, v0, 4, 1
        v_lshlrev_b32 {t}, 3, {t}
        v_and_b32 {dst}, 7, v0
        v_add_u32 {dst}, {dst}, {t}
        v_lshlrev_b32 {dst}, 4, {dst}
        v_lshrrev_b32 {t}, 5, v0
        """)
    def poll(loads, tags, chk):
        lab = a.newlab("L_poll"); ok = a.newlab("L_ok")
        a(f"s_mov_b32 s57, {SPIN}")
        a.label(lab)
        loads()
        a(f"v_mov_b32 {chk}, 0")
        a("s_waitcnt vmcnt(0)")
        for t in tags:
            a(f"v_bitop3_b32 {chk}, {chk}, {t}, s6 bitop3:0xf6")
        a(f"""
        v_cmp_ne_u32 vcc, 0, {chk}
        s_cbranch_vccz {ok}
        s_sub_u32 s57, s57, 1
        s_cmp_eq_u32 s57, 0
        s_cbranch_scc1 {ok}
        """)
        if SLEEP: a(f"s_sleep {SLEEP}")
        a(f"s_branch {lab}")
        a.label(ok)
    def silu(v, t):
        a(f"""
        v_mul_f32 {t}, {NLOG2E}, {v}
        v_exp_f32 {t}, {t}
        s_nop 0
        v_add_f32 {t}, 1.0, {t}
        v_rcp_f32 {t}, {t}
        s_nop 0
        v_mul_f32 {v}, {v}, {t}
        """)
    def finish():
        if stamps:
            a("s_waitcnt vmcnt(0) lgkmcnt(0)")
            stamp(NST - 1)
            a("s_waitcnt lgkmcnt(0)")
            exec_all()
            a("v_mov_b32 v4, 0")
            for i in range(2 * NST):
                a(f"v_writelane_b32 v4, s{70+i}, {i}")
            a(f"""
            s_lshl_b32 s57, s2, 3
            s_add_u32 s57, s57, s69
            s_mul_i32 s57, s57, {8*NST}
            s_add_u32 s57, s57, {STAMP}
            v_lshlrev_b32 v5, 2, v0
            v_cmp_gt_u32 vcc, {2*NST}, v0
            s_and_saveexec_b64 s[58:59], vcc
            buffer_store_dword v4, v5, s[44:47], s57 offen
            """)
        a("s_endpgm")
    def ln(vals, vm, vr, t0, t1, mask_from=None):
        a(f"v_add_f32 {t0}, v{vals[0]}, v{vals[1]}")
        for i, v in enumerate(vals):
            if i < 2: continue
            if i == mask_from: a("s_mov_b32 exec_hi, 0")
            a(f"v_add_f32 {t0}, {t0}, v{v}")
        if mask_from is not None: a("s_mov_b32 exec_hi, -1")
        red64("v_add_f32", t0, "s7")
        a(f"v_mov_b32 {vm}, {INV640}\nv_mul_f32 {vm}, s7, {vm}")
        a(f"v_mov_b32 {t0}, 0")
        for i, v in enumerate(vals):
            if i == mask_from: a("s_mov_b32 exec_hi, 0")
            a(f"v_sub_f32 {t1}, v{v}, {vm}\nv_fmac_f32 {t0}, {t1}, {t1}")
        if mask_from is not None: a("s_mov_b32 exec_hi, -1")
        red64("v_add_f32", t0, "s7")
        a(f"v_mov_b32 {vr}, {INV640}\nv_mul_f32 {vr}, s7, {vr}")
        rbf(vr, vr)
        a(f"v_add_f32 {vr}, {EPS}, {vr}")
        rbf(vr, vr)
        a(f"v_sqrt_f32 {vr}, {vr}\ns_nop 0")
        rbf(vr, vr)
        a(f"v_rcp_f32 {vr}, {vr}")
        rbf(vm, vm)
    def role_mlp(yes, no):
        a(f"""
        s_mul_i32 s42, s4, 86
        s_lshr_b32 s42, s42, 8
        s_mul_i32 s42, s42, 3
        s_sub_u32 s42, s4, s42
        s_add_u32 s42, s42, 5
        s_cmp_lg_u32 s42, s5
        s_cbranch_scc1 {no}
        s_cmp_lt_u32 s4, {NMLP}
        s_cbranch_scc1 {yes}
        """)

    a("s_cmp_ge_u32 s2, 256\ns_cbranch_scc1 L_end")
    if stamps:
        for i in range(NST):
            a(f"s_mov_b64 s[{70+2*i}:{71+2*i}], 0")
    stamp(0)
    a(f"""
    s_load_dwordx16 s[16:31], s[0:1], 0
    s_load_dwordx8 s[32:39], s[0:1], 64
    s_load_dwordx2 s[40:41], s[0:1], 96
    v_lshrrev_b32 v1, 6, v0
    v_and_b32 v0, 63, v0
    v_readfirstlane_b32 s3, v1
    s_lshr_b32 s4, s2, 3
    s_and_b32 s5, s2, 7
    v_lshrrev_b32 v1, 3, v0           ; u
    v_and_b32 v2, 7, v0               ; p
    v_lshlrev_b32 v3, 4, v2           ; p*16
    s_mov_b32 s69, s3
    s_cmp_ge_u32 s3, 4
    s_cbranch_scc1 L_service
    """)
    RB = 48
    a(f"""
    v_mul_u32_u24 v1, 384, v1
    v_add_u32 v1, v1, v3
    s_mul_i32 s42, s4, {HEADB}
    s_lshl_b32 s43, s5, 2
    s_add_u32 s43, s43, s3
    s_mul_i32 s60, s43, {TB}
    s_mov_b32 s61, {TB*WPG}           ; step
    s_mov_b32 s62, {X}
    s_mov_b32 s63, {1<<30}
    s_lshl_b32 s56, s4, 8
    s_add_u32 s56, s56, {W_CNT}
    s_waitcnt lgkmcnt(0)
    s_add_u32 s8, s18, s42
    s_addc_u32 s9, s19, 0
    s_mov_b32 s10, {HEADB}
    s_mov_b32 s11, 0x20000
    s_add_u32 s12, s20, s42
    s_addc_u32 s13, s21, 0
    s_mov_b32 s14, {HEADB}
    s_mov_b32 s15, 0x20000
    """)
    def issue(k):
        for j in range(3):
            r = RB + k * 24 + j * 4
            a(f"buffer_load_dwordx4 v[{r}:{r+3}], v1, s[8:11], s60 offen offset:{j*128} nt")
        for j in range(3):
            r = RB + k * 24 + 12 + j * 4
            a(f"buffer_load_dwordx4 v[{r}:{r+3}], v1, s[12:15], s60 offen offset:{j*128} nt")
    def nxt(k, static=False):
        if not static:
            lab = a.newlab("L_n"); l2 = a.newlab("L_m")
            a(f"""
            s_cmp_lg_u32 s62, 0
            s_cbranch_scc1 {lab}
            s_waitcnt lgkmcnt(0)
            s_add_u32 s66, s66, {X*WPG}
            s_mul_i32 s60, s66, {TB}
            s_mov_b32 s62, 1
            s_cmp_lt_u32 s66, {NT}
            s_cselect_b32 s63, s63, {L-1}
            s_cselect_b32 s62, s62, 0x7fffffff
            """)
            a.label(lab)
            a(f"""
            s_cmp_lg_u32 s62, 1
            s_cbranch_scc1 {l2}
            s_mov_b32 s66, 1
            s_atomic_add s66, s[64:65], 0x0 glc
            """)
            a.label(l2)
        issue(k)
        a("s_add_u32 s60, s60, s61\ns_sub_u32 s62, s62, 1")
    assert X > R + L + 1 and L >= 2
    for k in range(R):
        if k >= PACE:
            a(f"s_waitcnt vmcnt({6*(PACE-1)})")
        nxt(k, static=True)
        if k == 1:
            a("s_load_dword s6, s[40:41], 0")
            a("s_add_u32 s64, s40, s56\ns_addc_u32 s65, s41, 0")
            srd(44, 40, WSB)
            masks()
            for i in range(12):
                a(f"v_mov_b32 v{20+i}, 0")
            a("v_mov_b32 v40, 0\nv_mov_b32 v41, 0xff800000")
            a(f"s_mov_b32 s67, {SCALE}\ns_mov_b32 s68, {LOG2E}")
            a("s_waitcnt lgkmcnt(0)")
            make_tag()
    stamp(1)
    a("s_barrier")
    stamp(2)
    for j in range(3):
        a(f"ds_read_b128 v[{4+4*j}:{7+4*j}], v3 offset:{LQ + j*128}")
    a("s_waitcnt lgkmcnt(0)")
    def compute(k):
        kb = RB + k * 24
        upd = a.newlab("L_upd"); back = a.newlab("L_back")
        a("v_mov_b32 v16, 0")
        for j in range(12):
            a(f"v_dot2c_f32_bf16 v16, v{kb+j}, v{4+j}")
        a("s_nop 0")
        red8("v_add_f32", "v16")
        rbf("v17", "v16")
        a("v_mul_f32 v17, s67, v17")
        rbf("v17", "v17")
        a(f"v_cmp_gt_f32 vcc, v17, v41\ns_cbranch_vccnz {upd}")
        a.label(back)
        a(f"""
        v_sub_f32 v18, v17, v41
        v_mul_f32 v18, s68, v18
        v_exp_f32 v18, v18
        s_nop 0
        v_cvt_pk_bf16_f32 v19, v18, v18
        v_add_f32 v40, v40, v18
        """)
        bprep(32, "v19")
        a("s_nop 1")
        for j in range(3):
            mfma(20 + 4 * j, kb + 12 + 4 * j, 32)
        return upd, back
    cold = []
    for k in range(R):
        a(f"s_waitcnt vmcnt({6*(R-1-k+min(k,L))})")
        cold.append(compute(k))
        if k < L:
            nxt(k, static=True)
    a.label("L_loop")
    for k in range(L):
        a(f"s_waitcnt vmcnt({6*(L-1)})")
        cold.append(compute(k))
        a(f"""
        s_sub_u32 s63, s63, 1
        s_cmp_eq_u32 s63, 0
        s_cbranch_scc1 L_sdone
        """)
        nxt(k)
    a("s_branch L_loop")
    for upd, back in cold:
        a.label(upd)
        a("v_mov_b32 v18, v17")
        dpp("v_max_f32", "v18", "row_ror:8")
        dpp("v_max_f32", "v18", "row_bcast:15", rm="0xa")
        dpp("v_max_f32", "v18", "row_bcast:31", rm="0xc")
        a(f"""
        s_nop 0
        v_readlane_b32 s7, v18, 63
        s_nop 1
        v_subrev_f32 v18, s7, v41
        v_mul_f32 v18, s68, v18
        v_exp_f32 v18, v18
        v_mov_b32 v41, s7
        """)
        for i in range(12):
            a(f"v_mul_f32 v{20+i}, v{20+i}, v18")
        a(f"v_mul_f32 v40, v40, v18\ns_branch {back}")
    a.label("L_sdone")
    stamp(3)
    dpp("v_add_f32", "v40", "row_ror:8")
    dpp("v_add_f32", "v40", "row_bcast:15", rm="0xa")
    dpp("v_add_f32", "v40", "row_bcast:31", rm="0xc")
    dexch_addr("v16", "v17")
    a(f"""
    v_mul_u32_u24 v17, 768, v17
    s_mul_i32 s7, s3, 1536
    v_add3_u32 v16, v16, v17, s7
    s_lshl_b32 s7, s3, 3
    v_mov_b32 v17, s7
    v_mov_b32 v42, v41
    v_mov_b32 v43, v40
    """)
    exec_valid()
    for j in range(3):
        a(f"ds_write_b128 v16, v[{20+4*j}:{23+4*j}] offset:{LF + j*256}")
    a("s_mov_b32 exec_lo, 0\ns_mov_b32 exec_hi, 0x80000000")
    a(f"ds_write_b64 v17, v[42:43] offset:{LML}")
    exec_all()
    a("s_waitcnt lgkmcnt(0)")
    a("s_barrier")
    role_mlp("L_st4", "L_sexit")
    a.label("L_sexit")
    a("s_waitcnt vmcnt(0)")
    finish()
    a.label("L_st4")
    a(f"""
    v_lshlrev_b32 v24, 4, v0
    v_min_u32 v25, 27, v0
    v_lshlrev_b32 v25, 4, v25
    s_lshl_b32 s63, s3, 14
    s_add_u32 s63, s63, {W_YP}
    s_mul_i32 s56, s3, 2720
    s_add_u32 s56, s56, {LY}
    s_mov_b32 s58, 2979
    """)
    for k in range(4):
        a(f"""
        v_add_u32 v4, {64*k}, v0
        v_mul_u32_u24 v5, s58, v4
        v_lshrrev_b32 v5, 16, v5
        v_mul_u32_u24 v6, 22, v5
        v_sub_u32 v6, v4, v6
        v_mul_u32_u24 v6, 12, v6
        v_mul_u32_u24 v5, 272, v5
        v_add3_u32 v{12+k}, v5, v6, s56
        """)
    YG = 48
    a("s_waitcnt vmcnt(0)")
    def ld_y():
        for i in range(4):
            if i == 0: a("s_mov_b32 s56, s63")
            else: a("s_add_u32 s56, s56, 4096")
            for k in range(4):
                r = YG + (i * 4 + k) * 4
                a(f"buffer_load_dwordx4 v[{r}:{r+3}], {'v24' if k < 3 else 'v25'}, s[44:47], s56 offen offset:{k*1024} sc1")
    poll(ld_y, [f"v{YG+4*i+3}" for i in range(16)], "v4")
    stamp(4)
    for k in range(4):
        for e in range(3):
            r = YG + 4 * k + e
            a(f"v_add_f32 v{r}, v{r}, v{r+16}\nv_add_f32 v{r+32}, v{r+32}, v{r+48}\nv_add_f32 v{r}, v{r}, v{r+32}")
        if k == 3: a("s_mov_b32 exec_lo, 0x0fffffff\ns_mov_b32 exec_hi, 0")
        a(f"ds_write2_b32 v{12+k}, v{YG+4*k}, v{YG+4*k+1} offset0:0 offset1:1\nds_write_b32 v{12+k}, v{YG+4*k+2} offset:8")
    exec_all()
    a(f"""
    s_waitcnt lgkmcnt(0)
    s_barrier
    s_cmp_lg_u32 s3, 0
    s_cbranch_scc1 L_sexit
    s_cmp_ge_u32 s4, 20
    s_cbranch_scc1 L_sexit
    """)
    a(f"""
    v_and_b32 v4, 31, v0
    s_lshl_b32 s42, s4, 5
    v_add_u32 v5, s42, v4              ; phi
    """)
    phi2d("v6", "v5", "v7")
    a(f"""
    v_lshlrev_b32 v7, 2, v6            ; col*4
    v_lshlrev_b32 v6, 1, v6            ; col*2
    v_lshrrev_b32 v8, 5, v0
    v_mul_u32_u24 v8, {(NMLP//2)*5120}, v8
    v_lshl_add_u32 v8, v5, 3, v8
    """)
    srd(8, 36, 1280)
    a(f"""
    s_barrier
    ds_read_b32 v9, v7 offset:{LX2}
    ds_read_b32 v10, v7 offset:{LPAR + 3*2560}
    s_barrier
    """)
    def ld_z():
        a(f"s_mov_b32 s56, {W_ZP}")
        for k in range(NMLP // 2):
            a(f"buffer_load_dwordx2 v[{YG+2*k}:{YG+2*k+1}], v8, s[44:47], s56 offen sc1")
            if k < NMLP // 2 - 1: a("s_add_u32 s56, s56, 5120")
    stamp(5)
    poll(ld_z, [f"v{YG+2*k+1}" for k in range(NMLP // 2)], "v4")
    stamp(6)
    n = NMLP // 2
    idx = [YG + 2 * k for k in range(n)]
    while len(idx) > 1:
        nx = []
        for i in range(0, len(idx) - 1, 2):
            a(f"v_add_f32 v{idx[i]}, v{idx[i]}, v{idx[i+1]}")
            nx.append(idx[i])
        if len(idx) % 2: nx.append(idx[-1])
        idx = nx
    a(f"""
    v_mov_b32 v11, v{YG}
    s_nop 1
    v_permlane32_swap_b32 v11, v{YG}
    s_nop 1
    v_add_f32 v11, v11, v{YG}
    """)
    rbf("v11", "v11")
    a("s_waitcnt lgkmcnt(0)\nv_mul_f32 v11, v11, v10")
    rbf("v11", "v11")
    a(f"""
    v_add_f32 v11, v11, v9
    v_cvt_pk_bf16_f32 v11, v11, v11
    s_mov_b32 exec_hi, 0
    buffer_store_short v11, v6, s[8:11], 0 offen
    s_cmp_lg_u32 s4, 0
    s_cbranch_scc1 L_sexit
    s_mov_b64 exec, 1
    v_mov_b32 v4, 0
    v_mov_b32 v5, s6
    buffer_store_dword v5, v4, s[44:47], 0 offen
    s_branch L_sexit
    """)

    a.label("L_service")
    a(f"""
    s_setprio 3
    s_sub_u32 s3, s3, 4
    s_waitcnt lgkmcnt(0)
    s_load_dword s6, s[40:41], 0
    """)
    srd(44, 40, WSB)
    a(f"""
    s_cmp_eq_u32 s3, 1
    s_cbranch_scc1 L_s1
    s_cmp_lg_u32 s3, 0
    s_cbranch_scc1 L_s0_skip
    s_cmp_ge_u32 s2, 240
    s_cbranch_scc1 L_s0_skip
    """)
    WB = 48
    a(f"""
    s_mul_i32 s42, s2, 1093
    s_lshr_b32 s42, s42, 16            ; kq = b/60
    s_mul_i32 s43, s42, 60
    s_sub_u32 s43, s2, s43             ; cbm
    """)
    srd(8, 32, 1280)
    srd(12, 34, 640 * 7680)
    a(f"""
    v_mul_u32_u24 v4, 20, v1           ; 20u
    v_add_u32 v5, v4, v2               ; 20u+p
    v_lshlrev_b32 v6, 1, v5
    s_mul_i32 s56, s42, 320
    buffer_load_ushort v8, v6, s[8:11], s56 offen
    buffer_load_ushort v9, v6, s[8:11], s56 offen offset:16
    buffer_load_ushort v10, v6, s[8:11], s56 offen offset:32
    v_mul_u32_u24 v7, 7680, v4
    v_add_u32 v7, v7, v3
    s_mul_i32 s56, s42, {160*7680}
    s_lshl_b32 s57, s43, 7
    s_add_u32 s56, s56, s57
    """)
    for g in range(20):
        a(f"buffer_load_dwordx4 v[{WB+4*g}:{WB+4*g+3}], v7, s[12:15], s56 offen nt")
        if g < 19: a("s_add_u32 s56, s56, 7680")
    masks()
    a("v_lshlrev_b32 v6, 2, v5")
    a("s_waitcnt vmcnt(20) lgkmcnt(0)")
    make_tag()
    for t in range(3):
        a(f"v_lshlrev_b32 v{8+t}, 16, v{8+t}")
        silu(f"v{8+t}", "v11")
        a(f"v_cvt_pk_bf16_f32 v{8+t}, v{8+t}, v{8+t}")
    a(f"""
    ds_write_b32 v6, v8 offset:{LS0}
    ds_write_b32 v6, v9 offset:{LS0+32}
    s_mov_b32 exec_lo, 0x0f0f0f0f
    s_mov_b32 exec_hi, 0x0f0f0f0f
    ds_write_b32 v6, v10 offset:{LS0+64}
    s_mov_b64 exec, -1
    v_lshlrev_b32 v6, 2, v4
    s_waitcnt lgkmcnt(0)
    """)
    for t in range(5):
        a(f"ds_read_b128 v[{8+4*t}:{11+4*t}], v6 offset:{LS0+16*t}")
    for i in range(4):
        a(f"v_mov_b32 v{28+i}, 0")
    dexch_addr("v4", "v5")
    a(f"v_lshl_add_u32 v4, v5, 8, v4")
    phi2d("v6", "v0", "v7")
    a(f"""
    v_lshlrev_b32 v6, 3, v6
    v_lshlrev_b32 v7, 2, v0
    s_mul_i32 s56, s42, {3840*8}
    s_lshl_b32 s57, s43, 9
    s_add_u32 s56, s56, s57
    s_add_u32 s56, s56, {W_MODP}
    s_waitcnt lgkmcnt(0)
    """)
    for g in range(20):
        bb = 32 if g % 2 == 0 else 40
        bprep(bb, f"v{8+g}")
        a(f"s_waitcnt vmcnt({19-g})")
        a("s_nop 0")
        mfma(28, WB + 4 * g, bb)
    a("s_nop 5")
    exec_valid()
    a(f"ds_write_b128 v4, v[28:31] offset:{LS0+640}")
    exec_all()
    a(f"""
    s_waitcnt lgkmcnt(0)
    ds_read_b32 v8, v7 offset:{LS0+640}
    ds_read_b32 v9, v7 offset:{LS0+640+256}
    s_waitcnt lgkmcnt(0)
    v_add_f32 v8, v8, v9
    v_mov_b32 v9, s6
    buffer_store_dwordx2 v[8:9], v6, s[44:47], s56 offen sc1
    """)
    stamp(1)
    a("s_branch L_pro_done")
    a.label("L_s0_skip")
    masks()
    a("s_waitcnt lgkmcnt(0)")
    make_tag()
    a("s_branch L_pro_done")
    a.label("L_s1")
    srd(8, 16, 1280)
    srd(12, 22, 640 * 12288)
    a(f"""
    v_lshlrev_b32 v4, 2, v0
    s_mul_i32 s42, s5, 80
    v_add_u32 v5, s42, v0              ; col A = 80s + l
    v_and_b32 v6, 15, v0
    v_add_u32 v6, 64, v6
    v_add_u32 v6, s42, v6              ; col B = 80s + 64 + (l&15)
    v_lshlrev_b32 v7, 1, v5
    v_lshlrev_b32 v8, 1, v6
    """)
    for k in range(5):
        a(f"buffer_load_dword v{10+k}, v4, s[8:11], 0 offen offset:{256*k}")
    a(f"""
    buffer_load_ushort v15, v7, s[8:11], 0 offen
    buffer_load_ushort v16, v8, s[8:11], 0 offen
    v_mul_u32_u24 v9, 10, v1
    v_mul_u32_u24 v7, 12288, v9
    v_add_u32 v7, v7, v3
    s_mul_i32 s56, s42, 12288
    s_mul_i32 s57, s4, 384
    s_add_u32 s56, s56, s57
    """)
    QB = 88
    for g in range(10):
        for j in range(3):
            r = QB + 12 * g + 4 * j
            a(f"buffer_load_dwordx4 v[{r}:{r+3}], v7, s[12:15], s56 offen offset:{128*j} nt")
        if g < 9: a("s_add_u32 s56, s56, 12288")
    masks()
    a("s_waitcnt vmcnt(30) lgkmcnt(0)")
    make_tag()
    a(f"""
    s_cmp_lg_u32 s5, 0
    s_cbranch_scc1 L_s1_nz
    s_lshl_b32 s56, s4, 8
    s_add_u32 s56, s56, {W_CNT}
    v_mov_b32 v17, 0
    s_mov_b64 exec, 1
    buffer_store_dword v17, v17, s[44:47], s56 offen sc1
    s_mov_b64 exec, -1
    """)
    a.label("L_s1_nz")
    for k in range(5):
        a(f"v_lshlrev_b32 v{18+2*k}, 16, v{10+k}\nv_and_b32 v{19+2*k}, 0xffff0000, v{10+k}")
    ln(list(range(18, 28)), "v28", "v29", "v30", "v31")
    for v in (15, 16):
        a(f"v_lshlrev_b32 v{v}, 16, v{v}\nv_sub_f32 v{v}, v{v}, v28")
        rbf(f"v{v}", f"v{v}")
        a(f"v_mul_f32 v{v}, v{v}, v29")
        rbf(f"v{v}", f"v{v}")
    a("v_lshlrev_b32 v5, 3, v5\nv_lshlrev_b32 v6, 3, v6")
    GB = 48
    def ld_mod():
        for c, (va, base) in enumerate((("v5", 0), ("v5", 640), ("v6", 0), ("v6", 640))):
            for kq in range(4):
                r = GB + (c * 4 + kq) * 2
                a(f"s_mov_b32 s56, {W_MODP + kq*3840*8 + base*8}")
                a(f"buffer_load_dwordx2 v[{r}:{r+1}], {va}, s[44:47], s56 offen sc1")
    stamp(1)
    poll(ld_mod, [f"v{GB+2*i+1}" for i in range(16)], "v17")
    stamp(2)
    for c in range(4):
        r = GB + c * 8
        a(f"v_add_f32 v{r}, v{r}, v{r+2}\nv_add_f32 v{r+4}, v{r+4}, v{r+6}\nv_add_f32 v{r}, v{r}, v{r+4}")
        rbf(f"v{r}", f"v{r}")
    for v, sa, ca in ((15, GB, GB + 8), (16, GB + 16, GB + 24)):
        a(f"v_add_f32 v{ca}, 1.0, v{ca}")
        rbf(f"v{ca}", f"v{ca}")
        a(f"v_mul_f32 v{v}, v{v}, v{ca}")
        rbf(f"v{v}", f"v{v}")
        a(f"v_add_f32 v{v}, v{v}, v{sa}")
        a(f"v_cvt_pk_bf16_f32 v{v}, v{v}, v{v}")
    a(f"""
    v_and_b32 v6, 15, v0
    v_lshlrev_b32 v6, 2, v6
    ds_write_b32 v4, v15 offset:{LS1}
    ds_write_b32 v6, v16 offset:{LS1+256}
    v_lshlrev_b32 v9, 2, v9
    s_waitcnt lgkmcnt(0)
    """)
    for t in range(5):
        a(f"ds_read_b64 v[{10+2*t}:{11+2*t}], v9 offset:{LS1+8*t}")
    for i in range(12):
        a(f"v_mov_b32 v{20+i}, 0")
    dexch_addr("v4", "v5")
    a(f"""
    v_mul_u32_u24 v5, 768, v5
    v_add_u32 v4, v4, v5
    v_mul_u32_u24 v5, 12, v0
    v_add_u32 v5, {LS1+512}, v5
    v_lshlrev_b32 v6, 4, v0
    s_lshl_b32 s56, s2, 10
    s_add_u32 s56, s56, {W_QP}
    s_waitcnt lgkmcnt(0)
    """)
    for g in range(10):
        bb = 32 if g % 2 == 0 else 40
        bprep(bb, f"v{10+g}")
        a("s_nop 1")
        for j in range(3):
            mfma(20 + 4 * j, QB + 12 * g + 4 * j, bb)
    a("s_nop 5")
    exec_valid()
    for j in range(3):
        a(f"ds_write_b128 v4, v[{20+4*j}:{23+4*j}] offset:{LS1+512+j*256}")
    exec_all()
    a(f"""
    s_waitcnt lgkmcnt(0)
    ds_read2_b32 v[8:9], v5 offset0:0 offset1:1
    ds_read_b32 v10, v5 offset:8
    ds_read2_b32 v[12:13], v5 offset0:192 offset1:193
    ds_read_b32 v14, v5 offset:776
    v_mov_b32 v11, s6
    s_waitcnt lgkmcnt(0)
    v_add_f32 v8, v8, v12
    v_add_f32 v9, v9, v13
    v_add_f32 v10, v10, v14
    buffer_store_dwordx4 v[8:11], v6, s[44:47], s56 offen sc1
    s_lshl_b32 s42, s4, 13
    s_add_u32 s42, s42, {W_QP}
    """)
    stamp(3)
    a("v_mul_u32_u24 v12, 3, v0")
    for e in range(3):
        if e: a(f"v_add_u32 v12, 1, v12")
        phi2d(f"v{13+e}", "v12", "v16")
        a(f"v_lshlrev_b32 v{13+e}, 1, v{13+e}")
    def ld_q():
        a("s_mov_b32 s56, s42")
        for s in range(8):
            r = GB + 4 * s
            if s == 4: a("s_add_u32 s56, s56, 4096")
            a(f"buffer_load_dwordx4 v[{r}:{r+3}], v6, s[44:47], s56 offen offset:{(s%4)*1024} sc1")
    poll(ld_q, [f"v{GB+4*s+3}" for s in range(8)], "v17")
    stamp(4)
    for e in range(3):
        for s in (1, 3, 5, 7):
            a(f"v_add_f32 v{GB+4*(s-1)+e}, v{GB+4*(s-1)+e}, v{GB+4*s+e}")
        a(f"v_add_f32 v{GB+e}, v{GB+e}, v{GB+8+e}\nv_add_f32 v{GB+16+e}, v{GB+16+e}, v{GB+24+e}\nv_add_f32 v{GB+e}, v{GB+e}, v{GB+16+e}")
        a(f"v_cvt_pk_bf16_f32 v{GB+e}, v{GB+e}, v{GB+e}")
        a(f"ds_write_b16 v{13+e}, v{GB+e} offset:{LQ}")
    a("s_waitcnt lgkmcnt(0)")
    a.label("L_pro_done")
    a("s_barrier")
    stamp(5)
    a("s_cmp_lt_u32 s5, 5\ns_cbranch_scc1 L_wo")
    role_mlp("L_mlp", "L_norole")
    a.label("L_norole")
    a("s_barrier")
    T = 208
    def t1():
        skip = a.newlab("L_t1s")
        a(f"""
        s_cmp_lg_u32 s3, 0
        s_cbranch_scc1 {skip}
        v_mov_b32 v248, 0
        v_mul_u32_u24 v249, 12, v0
        v_add_u32 v249, {LF}, v249
        ds_read_b128 v[240:243], v248 offset:{LML}
        ds_read_b128 v[244:247], v248 offset:{LML+16}
        """)
        for pb in range(8):
            r = T + pb * 4
            a(f"ds_read2_b32 v[{r}:{r+1}], v249 offset0:0 offset1:1\nds_read_b32 v{r+2}, v249 offset:8")
            if pb < 7: a("v_add_u32 v249, 768, v249")
            if pb == 5: a("s_waitcnt lgkmcnt(10)")
        a(f"""
        v_max3_f32 v252, v240, v242, v244
        v_max_f32 v252, v252, v246
        v_lshlrev_b32 v249, 4, v0
        s_lshl_b32 s56, s2, 10
        s_add_u32 s56, s56, {W_OP}
        s_lshl_b32 s57, s2, 4
        s_add_u32 s57, s57, {W_ML}
        """)
        for w in range(4):
            r = 240 + 2 * w
            a(f"v_sub_f32 v{r}, v{r}, v252\nv_mul_f32 v{r}, {LOG2E}, v{r}\nv_exp_f32 v{r}, v{r}")
        a("v_mov_b32 v254, 0\nv_mul_f32 v253, v240, v241\nv_fmac_f32 v253, v242, v243\nv_fmac_f32 v253, v244, v245\nv_fmac_f32 v253, v246, v247")
        a("v_mov_b32 v255, s6")
        a("s_mov_b64 exec, 1")
        a(f"buffer_store_dwordx4 v[252:255], v248, s[44:47], s57 offen sc1")
        a("s_mov_b64 exec, -1")
        a("s_waitcnt lgkmcnt(0)")
        for e in range(3):
            for w in range(4):
                r0 = T + (2 * w) * 4 + e; r1 = r0 + 4
                a(f"v_add_f32 v{r0}, v{r0}, v{r1}")
                if w == 0: a(f"v_mul_f32 v{T+e}, v{r0}, v240")
                else: a(f"v_fmac_f32 v{T+e}, v{r0}, v{240+2*w}")
        a(f"v_mov_b32 v{T+3}, s6")
        a(f"buffer_store_dwordx4 v[{T}:{T+3}], v249, s[44:47], s56 offen sc1")
        a.label(skip)
    stamp(6)
    t1()
    stamp(7)
    a.label("L_svc_end")
    finish()

    a.label("L_wo")
    a(f"""
    s_mul_i32 s42, s4, 5
    s_add_u32 s42, s42, s5             ; y
    s_mul_i32 s43, s42, 6554
    s_lshr_b32 s43, s43, 16            ; hp = y/10
    s_mul_i32 s56, s43, 10
    s_sub_u32 s42, s42, s56            ; cb
    s_lshr_b32 s60, s3, 1
    s_lshl_b32 s61, s43, 1
    s_add_u32 s60, s60, s61
    s_and_b32 s61, s3, 1               ; half
    s_mul_i32 s62, s61, 96
    s_mul_i32 s56, s60, {192*1280}
    s_lshl_b32 s57, s42, 7
    s_add_u32 s56, s56, s57
    """)
    srd(12, 24, 6144 * 1280)
    for g in range(12):
        a(f"v_add_u32 v4, {8*g}, v1\nv_add_u32 v4, s62, v4")
        phi2d("v5", "v4", "v6")
        a(f"v_mul_u32_u24 v5, 1280, v5\nv_add_u32 v5, v5, v3")
        a(f"buffer_load_dwordx4 v[{WB+4*g}:{WB+4*g+3}], v5, s[12:15], s56 offen nt")
    a(f"""
    v_lshrrev_b32 v4, 5, v0            ; hi
    v_and_b32 v5, 31, v0
    s_lshl_b32 s57, s61, 9
    v_lshlrev_b32 v24, 4, v5
    v_lshl_add_u32 v24, v4, 10, v24
    v_add_u32 v24, s57, v24
    v_lshlrev_b32 v25, 4, v4
    s_lshl_b32 s63, s60, 13
    s_add_u32 s63, s63, {W_OP}
    s_lshl_b32 s64, s60, 7
    s_add_u32 s64, s64, {W_ML}
    s_mul_i32 s57, s3, 384
    s_add_u32 s57, s57, {LWO}
    v_mul_u32_u24 v6, 3, v5
    """)
    for e in range(3):
        if e: a("v_add_u32 v6, 1, v6")
        a(f"""
        v_and_b32 v7, 7, v6
        v_mul_u32_u24 v7, 48, v7
        v_lshrrev_b32 v8, 3, v6
        v_lshl_add_u32 v7, v8, 2, v7
        v_add_u32 v{26+e}, s57, v7
        """)
    a(f"v_mul_u32_u24 v29, 48, v1\nv_add_u32 v29, s57, v29")
    dexch_addr("v30", "v7")
    a(f"""
    v_lshl_add_u32 v30, v7, 8, v30
    s_lshl_b32 s57, s3, 9
    v_add_u32 v30, s57, v30
    v_min_u32 v6, 21, v0
    v_mul_u32_u24 v7, 3, v6
    v_lshlrev_b32 v47, 4, v6
    s_lshl_b32 s65, s43, 12
    s_mul_i32 s57, s42, {22*16}
    s_add_u32 s65, s65, s57
    s_add_u32 s65, s65, {W_YP}
    """)
    for e in range(3):
        if e: a("v_add_u32 v7, 1, v7")
        a("v_min_u32 v8, 63, v7")
        d2phi(f"v{44+e}", "v8", "v9")
        a(f"v_lshlrev_b32 v{44+e}, 2, v{44+e}")
    for i in range(4):
        a(f"v_mov_b32 v{20+i}, 0")
    a("s_barrier")
    stamp(6)
    t1()
    stamp(7)
    G = 112
    def ld_o():
        for k in range(4):
            if k == 2: a("s_add_u32 s56, s63, 4096")
            if k == 0: a("s_mov_b32 s56, s63")
            a(f"buffer_load_dwordx4 v[{G+4*k}:{G+4*k+3}], v24, s[44:47], s56 offen offset:{(k%2)*2048} sc1")
        for k in range(4):
            a(f"buffer_load_dwordx4 v[{G+16+4*k}:{G+16+4*k+3}], v25, s[44:47], s64 offen offset:{k*32} sc1")
    poll(ld_o, [f"v{G+4*k+3}" for k in range(8)], "v2")
    stamp(8)
    M = G + 16
    a(f"""
    v_max3_f32 v4, v{M}, v{M+4}, v{M+8}
    v_max_f32 v4, v4, v{M+12}
    v_mov_b32 v5, v4
    s_nop 1
    v_permlane32_swap_b32 v4, v5
    s_nop 1
    v_max_f32 v4, v4, v5
    """)
    for k in range(4):
        a(f"v_sub_f32 v{M+4*k}, v{M+4*k}, v4\nv_mul_f32 v{M+4*k}, {LOG2E}, v{M+4*k}\nv_exp_f32 v{M+4*k}, v{M+4*k}")
    a(f"v_mul_f32 v8, v{M}, v{M+1}")
    for k in range(1, 4):
        a(f"v_fmac_f32 v8, v{M+4*k}, v{M+4*k+1}")
    for e in range(3):
        a(f"v_mul_f32 v{9+e}, v{M}, v{G+e}")
        for k in range(1, 4):
            a(f"v_fmac_f32 v{9+e}, v{M+4*k}, v{G+4*k+e}")
    for i in range(4):
        a(f"v_mov_b32 v{12+i}, v{8+i}")
    a("s_nop 1")
    for i in range(4):
        a(f"v_permlane32_swap_b32 v{8+i}, v{12+i}")
    a("s_nop 1")
    for i in range(4):
        a(f"v_add_f32 v{8+i}, v{8+i}, v{12+i}")
    a("v_rcp_f32 v8, v8\ns_nop 0")
    for e in range(3):
        a(f"v_mul_f32 v{9+e}, v{9+e}, v8\nv_cvt_pk_bf16_f32 v{9+e}, v{9+e}, v{9+e}")
        a(f"ds_write_b32 v{26+e}, v{9+e}")
    a("s_waitcnt lgkmcnt(0)")
    for t in range(3):
        a(f"ds_read_b128 v[{8+4*t}:{11+4*t}], v29 offset:{16*t}")
    a("s_waitcnt lgkmcnt(0)")
    for g in range(12):
        bb = 32 if g % 2 == 0 else 40
        bprep(bb, f"v{8+g}")
        a("s_nop 1")
        mfma(20, WB + 4 * g, bb)
    a("s_nop 5")
    exec_valid()
    a(f"ds_write_b128 v30, v[20:23] offset:{LWD}")
    exec_all()
    a(f"""
    s_waitcnt lgkmcnt(0)
    s_barrier
    s_cmp_lg_u32 s3, 0
    s_cbranch_scc1 L_svc_end
    """)
    for pb in range(8):
        for e in range(3):
            a(f"ds_read_b32 v{G+pb*4+e}, v{44+e} offset:{LWD+pb*256}")
        if pb == 3: a("s_waitcnt lgkmcnt(0)")
    a("v_mov_b32 v11, s6\ns_waitcnt lgkmcnt(0)")
    for e in range(3):
        for pb in (0, 2, 4, 6):
            a(f"v_add_f32 v{G+pb*4+e}, v{G+pb*4+e}, v{G+pb*4+4+e}")
        a(f"v_add_f32 v{G+e}, v{G+e}, v{G+8+e}\nv_add_f32 v{G+16+e}, v{G+16+e}, v{G+24+e}\nv_add_f32 v{8+e}, v{G+e}, v{G+16+e}")
    a(f"""
    s_mov_b32 exec_lo, 0x3fffff
    s_mov_b32 exec_hi, 0
    buffer_store_dwordx4 v[8:11], v47, s[44:47], s65 offen sc1
    """)
    stamp(9)
    a("s_branch L_svc_end")

    a.label("L_mlp")
    PG = 48
    a(f"""
    v_lshlrev_b32 v4, 3, v0
    s_mul_i32 s42, s3, {640*8}
    s_add_u32 s42, s42, {W_MODP + 1280*8}
    """)
    def ld_par():
        for kq in range(4):
            a(f"s_add_u32 s56, s42, {kq*3840*8}")
            for j in range(10):
                if j == 8: a("s_add_u32 s56, s56, 4096")
                r = PG + (kq * 10 + j) * 2
                a(f"buffer_load_dwordx2 v[{r}:{r+1}], v4, s[44:47], s56 offen offset:{(j%8)*512} sc1")
    poll(ld_par, [f"v{PG+2*i+1}" for i in range(40)], "v5")
    a(f"""
    v_lshlrev_b32 v5, 2, v0
    s_mul_i32 s57, s3, 2560
    v_add_u32 v5, s57, v5
    s_cmp_eq_u32 s3, 2
    s_cselect_b32 s57, 1.0, 0
    """)
    for j in range(10):
        r = PG + 2 * j
        a(f"v_add_f32 v{r}, v{r}, v{r+20}\nv_add_f32 v{r+40}, v{r+40}, v{r+60}\nv_add_f32 v{r}, v{r}, v{r+40}")
        rbf(f"v{r}", f"v{r}")
        a(f"v_add_f32 v{r}, s57, v{r}")
        rbf(f"v{r}", f"v{r}")
        a(f"ds_write_b32 v5, v{r} offset:{LPAR + j*256}")
    srd(8, 16, 1280)
    a("v_lshlrev_b32 v28, 3, v0")
    for k in range(3):
        a(f"buffer_load_dwordx2 v[{16+2*k}:{17+2*k}], v28, s[8:11], 0 offen offset:{512*k}")
    srd(12, 28, 640 * 3072)
    srd(48, 30, 1536 * 1280)
    W1 = 48; W2 = 128
    a(f"""
    v_mul_u32_u24 v28, {20*3072}, v1
    v_add_u32 v28, v28, v3
    s_mul_i32 s56, s3, {160*3072}
    s_lshl_b32 s57, s4, 7
    s_add_u32 s56, s56, s57
    s_waitcnt lgkmcnt(0)
    """)
    for g in range(20):
        a(f"buffer_load_dwordx4 v[{W1+4*g}:{W1+4*g+3}], v28, s[12:15], s56 offen nt")
        if g < 19: a("s_add_u32 s56, s56, 3072")
    a(f"""
    v_mul_u32_u24 v28, 2560, v1
    v_add_u32 v28, v28, v3
    s_lshl_b32 s56, s4, 6
    s_lshl_b32 s57, s3, 4
    s_add_u32 s56, s56, s57
    s_mul_i32 s56, s56, 1280
    """)
    for g in range(2):
        for j in range(10):
            r = W2 + (g * 10 + j) * 4
            a(f"buffer_load_dwordx4 v[{r}:{r+3}], v28, s[48:51], s56 offen offset:{g*1280 + j*128} nt")
    a("s_waitcnt vmcnt(40)")
    XR = 4; GA = 16
    for k in range(3):
        for i in range(2):
            a(f"v_lshlrev_b32 v{XR+4*k+2*i}, 16, v{16+2*k+i}\nv_and_b32 v{XR+4*k+2*i+1}, 0xffff0000, v{16+2*k+i}")
    a(f"""
    v_lshrrev_b32 v32, 4, v0
    v_mul_u32_u24 v32, 272, v32
    v_and_b32 v33, 15, v0
    v_lshl_add_u32 v28, v33, 4, v32
    v_lshlrev_b32 v29, 4, v0
    v_mul_u32_u24 v30, 80, v1
    s_mul_i32 s57, s3, 640
    v_add_u32 v30, s57, v30
    """)
    dexch_addr("v31", "v32")
    a(f"""
    v_mul_u32_u24 v46, 2560, v32
    v_add_u32 v46, v46, v31
    s_mul_i32 s57, s3, 5120
    v_add_u32 v46, s57, v46
    v_lshl_add_u32 v31, v32, 8, v31
    s_lshl_b32 s57, s3, 9
    v_add_u32 v31, s57, v31
    """)
    for g in range(2):
        a(f"""
        v_lshlrev_b32 v32, 1, v1
        s_lshl_b32 s57, s3, 4
        s_add_u32 s57, s57, {g}
        v_add_u32 v32, s57, v32
        """)
        d2phi(f"v{44+g}", "v32", "v33")
        a(f"v_lshlrev_b32 v{44+g}, 2, v{44+g}\nv_lshl_add_u32 v{44+g}, v2, 8, v{44+g}")
    a(f"""
    v_min_u32 v32, 39, v0
    s_mul_i32 s57, s3, 640
    v_lshl_add_u32 v47, v32, 4, s57
    v_lshlrev_b32 v1, 1, v47
    s_mul_i32 s60, s4, 5120
    s_add_u32 s60, s60, {W_ZP}
    s_barrier
    """)
    stamp(6)
    for k in range(3):
        a(f"ds_read_b128 v[{GA+4*k}:{GA+4*k+3}], v29 offset:{LPAR + k*1024}")
    t1()
    stamp(7)
    a("s_waitcnt vmcnt(0) lgkmcnt(0)")
    a("s_barrier")
    stamp(8)
    Y = 208
    for v in range(4):
        for k in range(3):
            a(f"ds_read_b128 v[{Y+12*v+4*k}:{Y+12*v+4*k+3}], v28 offset:{LY + v*2720 + k*1088}")
    a("s_waitcnt lgkmcnt(6)")
    for i in range(12):
        a(f"v_add_f32 v{Y+i}, v{Y+i}, v{Y+12+i}")
    a("s_waitcnt lgkmcnt(0)")
    for i in range(12):
        a(f"v_add_f32 v{Y+24+i}, v{Y+24+i}, v{Y+36+i}")
    for i in range(12):
        a(f"v_add_f32 v{Y+i}, v{Y+i}, v{Y+24+i}")
    SB = Y + 12; CB = Y + 24
    for k in range(3):
        a(f"ds_read_b128 v[{SB+4*k}:{SB+4*k+3}], v29 offset:{LPAR + 2560 + k*1024}")
        a(f"ds_read_b128 v[{CB+4*k}:{CB+4*k+3}], v29 offset:{LPAR + 5120 + k*1024}")
    for i in range(12):
        rbf(f"v{Y+i}", f"v{Y+i}")
        a(f"v_mul_f32 v{Y+i}, v{Y+i}, v{GA+i}")
        rbf(f"v{Y+i}", f"v{Y+i}")
        a(f"v_add_f32 v{XR+i}, v{XR+i}, v{Y+i}")
        rbf(f"v{XR+i}", f"v{XR+i}")
    ln([XR + i for i in range(12)], "v32", "v33", "v34", "v35", mask_from=8)
    a("s_waitcnt lgkmcnt(0)")
    for i in range(12):
        a(f"v_sub_f32 v{Y+i}, v{XR+i}, v32")
        rbf(f"v{Y+i}", f"v{Y+i}")
        a(f"v_mul_f32 v{Y+i}, v{Y+i}, v33")
        rbf(f"v{Y+i}", f"v{Y+i}")
        a(f"v_mul_f32 v{Y+i}, v{Y+i}, v{CB+i}")
        rbf(f"v{Y+i}", f"v{Y+i}")
        a(f"v_add_f32 v{Y+i}, v{Y+i}, v{SB+i}")
        a(f"v_cvt_pk_bf16_f32 v{Y+i}, v{Y+i}, v{Y+i}")
    for k in range(3):
        a(f"ds_write_b128 v29, v[{Y+4*k}:{Y+4*k+3}] offset:{LH2 + k*1024}")
    for i in range(4):
        a(f"v_mov_b32 v{GA+i}, 0")
    a("s_waitcnt lgkmcnt(0)")
    HB = Y + 12
    for t in range(5):
        a(f"ds_read_b128 v[{HB+4*t}:{HB+4*t+3}], v30 offset:{LH2 + 16*t}")
    for k in range(3):
        a(f"ds_write_b128 v29, v[{XR+4*k}:{XR+4*k+3}] offset:{LX2 + k*1024}")
    a("s_waitcnt lgkmcnt(3)")
    for g in range(20):
        bb = 32 if g % 2 == 0 else 40
        bprep(bb, f"v{HB+g}")
        a("s_nop 1")
        mfma(GA, W1 + 4 * g, bb)
    OA = 48
    for i in range(8):
        a(f"v_mov_b32 v{OA+i}, 0")
    exec_valid()
    a(f"ds_write_b128 v31, v[{GA}:{GA+3}] offset:{LZ}")
    exec_all()
    for i in range(8, 40):
        a(f"v_mov_b32 v{OA+i}, 0")
    a("s_waitcnt lgkmcnt(0)\ns_barrier")
    stamp(9)
    a(f"ds_read_b32 v20, v44 offset:{LZ}\nds_read_b32 v21, v45 offset:{LZ}\ns_waitcnt lgkmcnt(0)")
    for ctl in ("quad_perm:[1,0,3,2]", "quad_perm:[2,3,0,1]", "row_half_mirror"):
        a("s_nop 0")
        a(f"v_add_f32_dpp v20, v20, v20 {ctl} row_mask:0xf bank_mask:0xf")
        a(f"v_add_f32_dpp v21, v21, v21 {ctl} row_mask:0xf bank_mask:0xf")
    for g in range(2):
        rbf(f"v{20+g}", f"v{20+g}")
        silu(f"v{20+g}", "v22")
        a(f"v_cvt_pk_bf16_f32 v{20+g}, v{20+g}, v{20+g}")
    bprep(32, "v20"); bprep(40, "v21")
    a("s_nop 1")
    for g in range(2):
        for j in range(10):
            mfma(OA + 4 * j, W2 + (g * 10 + j) * 4, 32 if g == 0 else 40)
    exec_valid()
    for j in range(10):
        if j == 9: a("s_nop 4")
        a(f"ds_write_b128 v46, v[{OA+4*j}:{OA+4*j+3}] offset:{LO + j*256}")
    exec_all()
    a("s_waitcnt lgkmcnt(0)\ns_barrier")
    for pb in range(8):
        a(f"ds_read_b128 v[{Y+4*pb}:{Y+4*pb+3}], v47 offset:{LO + pb*2560}")
    a("v_mov_b32 v5, s6\nv_mov_b32 v7, s6\nv_mov_b32 v9, s6\nv_mov_b32 v11, s6")
    a("s_waitcnt lgkmcnt(0)")
    for r in range(4):
        for pb in (0, 2, 4, 6):
            a(f"v_add_f32 v{Y+4*pb+r}, v{Y+4*pb+r}, v{Y+4*pb+4+r}")
        a(f"v_add_f32 v{Y+r}, v{Y+r}, v{Y+8+r}\nv_add_f32 v{Y+16+r}, v{Y+16+r}, v{Y+24+r}\nv_add_f32 v{4+2*r}, v{Y+r}, v{Y+16+r}")
    a(f"""
    s_mov_b32 exec_hi, 0xff
    buffer_store_dwordx4 v[4:7], v1, s[44:47], s60 offen sc1
    buffer_store_dwordx4 v[8:11], v1, s[44:47], s60 offen offset:16 sc1
    """)
    stamp(10)
    a("s_branch L_svc_end")
    a.label("L_end")
    a("s_endpgm")
    return wrap([dict(name=KN, body=a.text(), grid=256, block=512, lds=LDS_BYTES, vgpr=256)])

if __name__ == "__main__":
    open("k_v1.s", "w").write(gen())
    open("k_v1s.s", "w").write(gen(stamps=True))
```
